```python
import torch

def _softmax(x, axis=-1):
    return torch.softmax(x, dim=axis)
def _gelu(x):
    return torch.nn.functional.gelu(x, approximate="tanh")
def _silu(x):
    return torch.nn.functional.silu(x)
def _sigmoid(x):
    return torch.sigmoid(x)
def _layernorm(x, axis=-1, eps=1e-5):
    m = x.mean(dim=axis, keepdim=True)
    v = x.var(dim=axis, keepdim=True, unbiased=False)
    return (x - m) / torch.sqrt(v + eps)
def _scatter_add(tgt, idx, src, axis=0):
    return tgt.clone().index_add_(axis, idx, src)
def _segment_sum(src, seg, n):
    out = torch.zeros((n,) + src.shape[1:], dtype=src.dtype)
    return out.index_add_(0, seg, src)
def _pad(x, pw):
    flat = tuple(v for pair in reversed(pw) for v in pair)
    return torch.nn.functional.pad(x, flat)

kernel_name = 'parallel_sum__mha_block_cached__geglu_ffn__decode'

def setup_inputs():

    _w = (lambda a: (lambda t: t.to(torch.bfloat16) if t.is_floating_point() else t)(torch.as_tensor(a)))
    def _A_setup():
        B, Sq, D = 2, 1, 512
        H, Sk, Dh = 32, 4096, 128
        return {
            "x": _w((lambda *s: torch.randn(*s, dtype=torch.bfloat16) * 0.05)(B, Sq, D)),
            "k_cache": _w((lambda *s: torch.randn(*s, dtype=torch.bfloat16) * 3.2)(B, H, Sk, Dh)),
            "v_cache": _w((lambda *s: torch.randn(*s, dtype=torch.bfloat16) * 1.6)(B, H, Sk, Dh)),
            "wq": _w((lambda *s: torch.randn(*s, dtype=torch.bfloat16) * 3.2)(D, H * Dh) * (D ** -0.5)),
            "wo": _w((lambda *s: torch.randn(*s, dtype=torch.bfloat16) * 1.6)(H * Dh, D) * ((H * Dh) ** -0.5)),
        }
    _A_in = _A_setup()

    def _B_setup():
        B, S, D, F = 2, 1, 512, 1376
        return {
            "x": _w((lambda *s: torch.randn(*s, dtype=torch.bfloat16) * 0.05)(B, S, D)),
            "w_gate": _w((lambda *s: torch.randn(*s, dtype=torch.bfloat16) * 0.05)(D, F)),
            "w_up": _w((lambda *s: torch.randn(*s, dtype=torch.bfloat16) * 0.05)(D, F)),
            "w_down": _w((lambda *s: torch.randn(*s, dtype=torch.bfloat16) * 0.05)(F, D)),
        }
    _B_in = _B_setup()

    return {
        "A_x": _A_in["x"],
        "A_k_cache": _A_in["k_cache"],
        "A_v_cache": _A_in["v_cache"],
        "A_wq": _A_in["wq"],
        "A_wo": _A_in["wo"],
        "B_x": _B_in["x"],
        "B_w_gate": _B_in["w_gate"],
        "B_w_up": _B_in["w_up"],
        "B_w_down": _B_in["w_down"],
    }

def reference(A_x, A_k_cache, A_v_cache, A_wq, A_wo, B_x, B_w_gate, B_w_up, B_w_down):
    def _A_ref(x, k_cache, v_cache, wq, wo):
        B, Sq, D = x.shape
        H, Dh = 32, 128
        q = (lambda x, *d: x.permute(*d))((x @ wq).reshape(B, Sq, H, Dh), 0, 2, 1, 3)
        scores = torch.einsum("bhqd,bhkd->bhqk", q, k_cache) * (Dh ** -0.5)
        p = _softmax(scores, axis=-1)
        o = torch.einsum("bhqk,bhkd->bhqd", p, v_cache)
        return (lambda x, *d: x.permute(*d))(o, 0, 2, 1, 3).reshape(B, Sq, H * Dh) @ wo

    def _B_ref(x, w_gate, w_up, w_down):
        return (_gelu(x @ w_gate) * (x @ w_up)) @ w_down

    x = A_x
    xn = _layernorm(x, axis=-1)
    return x + _A_ref(xn, A_k_cache, A_v_cache, A_wq, A_wo) + _B_ref(xn, B_w_gate, B_w_up, B_w_down)
```

```python
import re

TRANS = ("v_exp_f32", "v_log_f32", "v_rcp_f32", "v_rsq_f32", "v_sqrt_f32", "v_sin_f32", "v_cos_f32")

def regs_of(tok):
    tok = tok.strip()
    tok = re.sub(r"^(-|abs\(|\|)+", "", tok).rstrip(")|")
    m = re.fullmatch(r"([vsa])(\d+)", tok)
    if m: return {(m.group(1), int(m.group(2)))}
    m = re.fullmatch(r"([vsa])\[(\d+):(\d+)\]", tok)
    if m: return {(m.group(1), i) for i in range(int(m.group(2)), int(m.group(3)) + 1)}
    if tok in ("vcc", "vcc_lo", "vcc_hi"): return {("vcc", 0)}
    if tok in ("exec", "exec_lo", "exec_hi"): return {("exec", 0)}
    if tok == "m0": return {("m0", 0)}
    return set()

def split_ops(s):
    out, depth, cur = [], 0, ""
    for ch in s:
        if ch in "[(": depth += 1
        if ch in "])": depth -= 1
        if ch == "," and depth == 0:
            out.append(cur); cur = ""
        else:
            cur += ch
    if cur.strip(): out.append(cur)
    return [o.strip() for o in out]

class Ins:
    def __init__(self, text):
        self.text = text
        t = text.split(";")[0].strip()
        parts = t.split(None, 1)
        self.op = parts[0]
        rest = parts[1] if len(parts) > 1 else ""
        ops = split_ops(rest)
        toks = []
        for o in ops:
            f = o.split()
            toks.append(f[0] if f else "")
        self.mods = rest
        op = self.op
        self.valu = op.startswith("v_")
        self.mfma = op.startswith("v_mfma")
        self.dot = op.startswith("v_dot")
        self.trans = any(op.startswith(x) for x in TRANS)
        self.dpp = "_dpp" in op or "row_" in rest or "quad_perm" in rest
        self.perml = op.startswith("v_permlane")
        self.rdlane = op.startswith("v_readlane") or op.startswith("v_readfirstlane")
        self.vmem = op.startswith("buffer_") or op.startswith("global_") or op.startswith("flat_")
        self.ds = op.startswith("ds_")
        self.salu = op.startswith("s_")
        self.nop = op == "s_nop"
        W, R = set(), set()
        self.srcC = set(); self.srcAB = set()
        if self.valu:
            if self.perml:
                W |= regs_of(toks[0]) | regs_of(toks[1]); R |= W
            elif op.startswith("v_cmp"):
                W |= regs_of(toks[0])
                for t_ in toks[1:]: R |= regs_of(t_)
            else:
                W |= regs_of(toks[0])
                for t_ in toks[1:]: R |= regs_of(t_)
                if op.startswith(("v_fmac", "v_dot2c", "v_mac")) or self.dpp:
                    R |= regs_of(toks[0])
                if op.startswith(("v_add_co", "v_sub_co", "v_addc_co")):
                    W |= regs_of(toks[1])
                if op.startswith("v_cndmask") and len(toks) == 3: R.add(("vcc", 0))
                if self.mfma or self.dot:
                    if op.startswith("v_dot2c"):
                        self.srcC = regs_of(toks[0]); self.srcAB = regs_of(toks[1]) | regs_of(toks[2])
                    else:
                        self.srcC = regs_of(toks[3]); self.srcAB = regs_of(toks[1]) | regs_of(toks[2])
        elif self.vmem:
            if "load" in op and " lds" not in rest:
                W |= regs_of(toks[0])
                for t_ in toks[1:]: R |= regs_of(t_)
            else:
                for t_ in toks: R |= regs_of(t_)
            self.widestore = ("store" in op) and ("x4" in op or "x3" in op)
            self.storedata = regs_of(toks[0]) if op.startswith("buffer_store") else (regs_of(toks[1]) if op.startswith("global_store") else set())
        elif self.ds:
            if op.startswith(("ds_read", "ds_bpermute", "ds_permute", "ds_swizzle")) or "_rtn" in op:
                W |= regs_of(toks[0])
                for t_ in toks[1:]: R |= regs_of(t_)
            else:
                for t_ in toks: R |= regs_of(t_)
        elif self.salu:
            if op.startswith(("s_cmp", "s_cbranch", "s_branch", "s_waitcnt", "s_barrier", "s_nop", "s_sleep", "s_setprio", "s_endpgm", "s_setpc")):
                for t_ in toks: R |= regs_of(t_)
            else:
                if toks: W |= regs_of(toks[0])
                for t_ in toks[1:]: R |= regs_of(t_)
        self.W, self.R = W, R
        self.states = int(toks[0], 0) + 1 if self.nop else 1

def need(p, c):
    n = 0
    vW = {r for r in p.W if r[0] in "va"}
    sW = {r for r in p.W if r[0] in ("s", "vcc")}
    if p.valu and not p.mfma:
        if c.valu and c.dpp and (vW & c.R): n = max(n, 2)
        if c.perml and (vW & c.R): n = max(n, 2)
        if p.trans and (vW & c.R) and not c.trans: n = max(n, 1)
        if c.rdlane and (vW & c.R): n = max(n, 1)
        if c.mfma and (vW & c.R): n = max(n, 2)
        if sW and c.valu and (sW & c.R): n = max(n, 4 if c.rdlane else 2)
        if sW and c.vmem and (sW & c.R): n = max(n, 5)
        if ("exec", 0) in p.W and c.valu: n = max(n, 5)
        if "sdwa" in p.op and c.valu and (vW & (c.R | c.W)): n = max(n, 1)
        if p.dot:
            same = (c.op.replace("_dpp", "").replace("_e32", "") == p.op.replace("_dpp", "").replace("_e32", ""))
            if same:
                if vW & c.srcAB: n = max(n, 3)
            elif vW & (c.R | c.W): n = max(n, 3)
    if p.mfma:
        passes = 8 if "32x32" in p.op else 4
        tbl_rd = {4: 8, 8: 12}[passes]; tbl_ov = {4: 6, 8: 10}[passes]; tbl_war = {4: 3, 8: 7}[passes]
        if c.mfma:
            if vW & c.srcAB: n = max(n, tbl_rd)
            if vW & c.srcC and c.srcC != vW: n = max(n, tbl_ov)
        else:
            if vW & (c.R | c.W): n = max(n, tbl_rd)
            if c.valu and (p.srcC & c.W): n = max(n, tbl_war)
    if p.vmem and getattr(p, "widestore", False):
        if p.storedata & c.W: n = max(n, 2)
    if p.salu and ("m0", 0) in p.W and (c.vmem and " lds" in c.mods): n = max(n, 1)
    return n

class Asm:
    def __init__(self):
        self.lines = []
        self.hist = []
    def raw(self, text):
        self.lines.append(text)
    def label(self, name, pad=True):
        self.lines.append(f"{name}:")
        self.hist = [] if not pad else self.hist
    def __call__(self, text):
        for ln in text.strip().split("\n"):
            ln = ln.strip()
            if not ln or ln.startswith(";"):
                if ln: self.lines.append("  " + ln)
                continue
            if ln.endswith(":"):
                self.label(ln[:-1]); continue
            ins = Ins(ln)
            req = 0
            dist = 0
            for p in reversed(self.hist):
                r = need(p, ins) - dist
                req = max(req, r)
                dist += p.states
                if dist > 20: break
            while req > 0:
                k = min(req, 16)
                nop = Ins(f"s_nop {k-1}")
                self.lines.append(f"  s_nop {k-1}")
                self.hist.append(nop)
                req -= k
            self.lines.append("  " + ln)
            self.hist.append(ins)
            if len(self.hist) > 40: self.hist = self.hist[-40:]
    def text(self):
        return "\n".join(self.lines) + "\n"
```

```python
import sys, argparse, struct, math
from asmlib import Asm
NAME = "parallel_sum__mha_block_cached__geglu_ffn__decode"

YA, YB, OH = 0x00000, 0x80000, 0x100000
WS_SZ = 0x200000
L_QP, L_A, L_ML, L_F, L_H = 0, 4096, 8704, 8768, 8832
LDS_BYTES = 9216
LOG2E = "0x3fb8aa3b"
SPIN = 0x40000
f2h = lambda f: "0x%08x" % struct.unpack("<I", struct.pack("<f", f))[0]

class VM:
    def __init__(self, a): self.a = a; self.q = []; self.done = -1
    def issue(self, tag, text):
        self.a(text); self.q.append(tag)
    def wait(self, tag):
        i = self.q.index(tag)
        if i <= self.done: return
        n = len(self.q) - 1 - i
        assert n <= 63, n
        self.a(f"s_waitcnt vmcnt({n})")
        self.done = i

def gen(o, header=""):
    kvflags, wflags, fflags, D, stamps = o.kv, o.w, o.f, o.D, o.stamps
    a = Asm()
    NST = 16
    def stamp(i):
        if stamps:
            a(f"s_memrealtime s[{70+2*i}:{71+2*i}]")
    def stamp_flush():
        if not stamps: return
        a("s_load_dwordx2 s[60:61], s[0:1], 88")
        a("s_mul_i32 s64, s2, 10")
        a("s_add_u32 s64, s64, s3")
        a("s_lshl_b32 s64, s64, 7")
        a("s_add_u32 s64, s64, 0x8000000")
        a("s_waitcnt lgkmcnt(0)")
        a("s_mov_b32 s62, 0x10000000")
        a("s_mov_b32 s63, 0x20000")
        a("s_mov_b64 exec, 1")
        a("v_mov_b32 v0, 0")
        for i in range(0, NST, 2):
            for k in range(4):
                a(f"v_mov_b32 v{4+k}, s{70+2*i+k}")
            a(f"buffer_store_dwordx4 v[4:7], v0, s[60:63], s64 offen offset:{i*8}")
            a("s_nop 2")
    def lgk(n):
        a(f"s_waitcnt lgkmcnt({0 if stamps else n})")
    def allreduce(op, v, t):
        vs = v if isinstance(v, list) else [v]
        ts = t if isinstance(t, list) else [t]
        for r in (8, 4, 2, 1):
            for x in vs:
                a(f"{op}_dpp v{x}, v{x}, v{x} row_ror:{r} row_mask:0xf bank_mask:0xf")
        for sw in ("v_permlane16_swap_b32", "v_permlane32_swap_b32"):
            for x, y in zip(vs, ts): a(f"v_mov_b32 v{y}, v{x}")
            for x, y in zip(vs, ts): a(f"{sw} v{x}, v{y}")
            for x, y in zip(vs, ts): a(f"{op} v{x}, v{x}, v{y}")
    def srd(n, lo, size):
        a(f"s_mov_b32 s{n}, s{lo}")
        a(f"s_mov_b32 s{n+1}, s{lo+1}")
        a(f"s_mov_b32 s{n+2}, {size}")
        a(f"s_mov_b32 s{n+3}, 0x20000")
    def rnd2(x, y, t):
        a(f"v_cvt_pk_bf16_f32 v{t}, v{x}, v{y}")
        a(f"v_lshlrev_b32 v{x}, 16, v{t}")
        a(f"v_and_b32 v{y}, s12, v{t}")
    def ln_stats(raw, E, S, TT, M, R):
        nb = len(raw); B = range(nb)
        for b in B:
            for q in range(4):
                a(f"v_lshlrev_b32 v{E[b][2*q]}, 16, v{raw[b]+q}")
                a(f"v_and_b32 v{E[b][2*q+1]}, s12, v{raw[b]+q}")
        for b in B: a(f"v_add_f32 v{S[b]}, v{E[b][0]}, v{E[b][1]}")
        for b in B: a(f"v_add_f32 v{TT[b]}, v{E[b][2]}, v{E[b][3]}")
        for i in (4, 6):
            for b in B: a(f"v_add_f32 v{S[b]}, v{S[b]}, v{E[b][i]}")
            for b in B: a(f"v_add_f32 v{TT[b]}, v{TT[b]}, v{E[b][i+1]}")
        for b in B: a(f"v_add_f32 v{S[b]}, v{S[b]}, v{TT[b]}")
        allreduce("v_add_f32", S, TT)
        for b in B: a(f"v_mul_f32 v{M[b]}, 0x3b000000, v{S[b]}")
        for i in range(8):
            for b in B:
                a(f"v_sub_f32 v{R[b]}, v{E[b][i]}, v{M[b]}")
                a(f"v_mul_f32 v{S[b]}, v{R[b]}, v{R[b]}" if i == 0 else f"v_fmac_f32 v{S[b]}, v{R[b]}, v{R[b]}")
        allreduce("v_add_f32", S, TT)
        for b in B: a(f"v_mul_f32 v{S[b]}, 0x3b000000, v{S[b]}")
        for b in B: rnd2(S[b], M[b], TT[b])
        for b in B: a(f"v_add_f32 v{S[b]}, 0x3727c5ac, v{S[b]}")
        for b in B:
            a(f"v_cvt_pk_bf16_f32 v{S[b]}, v{S[b]}, v{S[b]}")
            a(f"v_lshlrev_b32 v{S[b]}, 16, v{S[b]}")
        for b in B: a(f"v_sqrt_f32 v{S[b]}, v{S[b]}")
        for b in B:
            a(f"v_cvt_pk_bf16_f32 v{S[b]}, v{S[b]}, v{S[b]}")
            a(f"v_lshlrev_b32 v{S[b]}, 16, v{S[b]}")
        for b in B: a(f"v_rcp_f32 v{R[b]}, v{S[b]}")

    a.raw(header.rstrip("\n"))
    a.raw(f"; @launch grid=(256,1,1) block=(576,1,1) lds={LDS_BYTES}")
    a.raw('.amdgcn_target "amdgcn-amd-amdhsa--gfx950"')
    a.raw(".text")
    a.raw(f".globl {NAME}_kernel")
    a.raw(".p2align 8")
    a.raw(f".type {NAME}_kernel,@function")
    a.raw(f"{NAME}_kernel:")
    a("s_load_dwordx16 s[16:31], s[0:1], 0")
    a("s_load_dwordx8 s[32:39], s[0:1], 64")
    if stamps:
        for i in range(1, NST): a(f"s_mov_b64 s[{70+2*i}:{71+2*i}], 0")
    stamp(0)
    a("s_cmp_ge_u32 s2, 256")
    a("s_cbranch_scc1 L_end")
    a("v_lshrrev_b32 v1, 6, v0")
    a("s_and_b32 s4, s2, 7")
    a("v_readfirstlane_b32 s3, v1")
    a("s_lshr_b32 s5, s2, 6")
    a("s_lshl_b32 s4, s4, 2")
    a("s_add_u32 s4, s4, s5")
    a("s_bfe_u32 s5, s2, 0x30003")
    a("v_and_b32 v0, 63, v0")
    a("s_lshr_b32 s6, s5, 2")
    a("s_and_b32 s7, s5, 3")
    a("s_mov_b32 s12, 0xffff0000")
    a("s_mov_b32 s10, 0x05040100")
    a("s_mov_b32 s11, 0x07060302")
    a("s_cmp_ge_u32 s3, 8")
    a("s_cbranch_scc1 L_helper")
    W, T, RB, C = 24, 88, 104, 16
    a("s_lshl_b32 s8, s6, 5")
    a("s_add_u32 s8, s8, s4")
    a("s_lshl_b32 s8, s8, 20")
    a("s_lshl_b32 s9, s7, 18")
    a("s_add_u32 s8, s8, s9")
    a("s_lshl_b32 s9, s3, 15")
    a("v_lshlrev_b32 v16, 4, v0")
    a("v_add_u32 v1, s9, v16")
    a("v_lshlrev_b32 v17, 1, v0")
    a("s_lshl_b32 s13, s6, 10")
    a("s_lshl_b32 s14, s3, 7")
    a("s_add_u32 s14, s14, s13")
    a("v_lshrrev_b32 v19, 4, v0")
    a("v_and_b32 v20, 15, v0")
    a("v_lshlrev_b32 v18, 17, v19")
    a("v_lshl_add_u32 v18, v20, 4, v18")
    a("s_lshl_b32 s15, s3, 19")
    a("s_lshl_b32 s9, s4, 8")
    a("s_add_u32 s15, s15, s9")
    for n, size in ((40, 0x40000), (44, 0x40000), (48, 0x400000), (52, 2048), (56, WS_SZ)):
        a(f"s_mov_b32 s{n+2}, {size}")
        a(f"s_mov_b32 s{n+3}, 0x20000")
    a("s_waitcnt lgkmcnt(0)")
    a("s_mov_b32 s52, s16")
    a("s_mov_b32 s53, s17")
    a("s_add_u32 s40, s18, s8")
    a("s_addc_u32 s41, s19, 0")
    a("s_mov_b32 s48, s22")
    a("s_mov_b32 s49, s23")
    vm = VM(a)
    st = dict(n=0)
    def slot(i):
        if 16 <= i < 20: return T + 4 * (i - 16)
        if i >= 20: i -= 4
        return RB + 4 * (i % C)
    def issue():
        i = st["n"]
        if i >= 64: return
        t = i % 32
        srdn = "s[40:43]" if i < 32 else "s[44:47]"
        if t % 4 == 0:
            a(f"s_movk_i32 s64, {(t//4)*4096}")
        r = slot(i)
        vm.issue(f"kv{i}", f"buffer_load_dwordx4 v[{r}:{r+3}], v1, {srdn}, s64 offen offset:{(t%4)*1024} {kvflags}")
        st["n"] += 1
    vm.issue("x4", "buffer_load_dwordx4 v[2:5], v16, s[52:55], s13 offen")
    vm.issue("xs", "buffer_load_ushort v6, v17, s[52:55], s14 offen")
    for i in range(o.E0): issue()
    for t in range(16):
        vm.issue(f"wq{t}", f"buffer_load_dwordx4 v[{W+4*t}:{W+4*t+3}], v18, s[48:51], s15 offen {wflags}")
        if t < 15: a("s_add_u32 s15, s15, 0x2000")
    while st["n"] < o.E1: issue()
    a("s_add_u32 s44, s20, s8")
    a("s_addc_u32 s45, s21, 0")
    a("s_mov_b32 s56, s38")
    a("s_mov_b32 s57, s39")
    a("s_mov_b32 s48, s24")
    a("s_mov_b32 s49, s25")
    a("s_mov_b32 s66, 0x22222222"); a("s_mov_b32 s67, 0x22222222")
    a("s_mov_b32 s68, 0x44444444"); a("s_mov_b32 s69, 0x44444444")
    a("s_mov_b32 s60, 0x88888888"); a("s_mov_b32 s61, 0x88888888")
    a("s_lshl_b32 s15, s4, 17")
    a("s_lshl_b32 s9, s3, 7")
    a("s_add_u32 s15, s15, s9")
    vm.wait("xs")
    stamp(1)
    ln_stats([2], [list(range(16, 24))], [8], [9], [10], [11])
    a("v_lshlrev_b32 v6, 16, v6")
    a("v_sub_f32 v6, v6, v10")
    a("v_cvt_pk_bf16_f32 v6, v6, v6")
    a("v_lshlrev_b32 v6, 16, v6")
    a("v_mul_f32 v6, v6, v11")
    a("v_mov_b32_dpp v7, v6 quad_perm:[1,1,3,3] row_mask:0xf bank_mask:0xf")
    a("v_cvt_pk_bf16_f32 v5, v6, v7")
    a("v_lshrrev_b32 v3, 4, v0")
    a("v_and_b32 v4, 15, v0")
    a("v_lshlrev_b32 v2, 5, v4")
    a("v_lshl_add_u32 v2, v3, 3, v2")
    a("v_lshlrev_b32 v3, 13, v3")
    a("v_lshl_add_u32 v3, v4, 3, v3")
    a("s_lshl_b32 s14, s3, 9")
    a("v_add_u32 v4, s14, v2")
    k = 0
    while st["n"] < o.E2:
        vm.wait(f"kv{k}"); issue(); k += 1
    stamp(2)
    for p in range(8):
        X = 6 + (p & 1)
        a(f"v_mov_b32_dpp v{X}, v5 row_newbcast:{2*p} row_mask:0xf bank_mask:0xf")
        vm.wait(f"wq{2*p+1}")
        A_, B_ = W + 8 * p, W + 8 * p + 4
        for d in range(4):
            a(f"v_perm_b32 v{16+2*d}, v{B_+d}, v{A_+d}, s10")
            a(f"v_perm_b32 v{17+2*d}, v{B_+d}, v{A_+d}, s11")
        for i in range(8):
            c = "0" if p == 0 else f"v{8+i}"
            a(f"v_dot2_f32_bf16 v{8+i}, v{16+i}, v{X}, {c}")
    stamp(3)
    for i in range(4): a(f"v_permlane32_swap_b32 v{8+i}, v{12+i}")
    for i in range(4): a(f"v_add_f32 v{8+i}, v{8+i}, v{12+i}")
    for i in range(2): a(f"v_permlane16_swap_b32 v{8+i}, v{10+i}")
    for i in range(2): a(f"v_add_f32 v{8+i}, v{8+i}, v{10+i}")
    a(f"ds_write_b64 v4, v[8:9] offset:{L_QP}")
    wo = dict(n=0)
    def issue_wo():
        i = wo["n"]
        if i >= 32: return
        t, r = i >> 3, i & 7
        w_ = W + 16 * t + 2 * r
        vm.issue(f"wo{i}", f"buffer_load_dwordx2 v[{w_}:{w_+1}], v3, s[48:51], s15 offen offset:{(r&3)*1024} {wflags}")
        if r == 3: a("s_add_u32 s15, s15, 0x1000")
        if r == 7 and t < 3: a("s_add_u32 s15, s15, 0x7000")
        wo["n"] += 1
    for i in range(o.WO0): issue_wo()
    a("s_waitcnt lgkmcnt(0)")
    a("s_barrier")
    for w in range(8): a(f"ds_read_b64 v[{8+2*w}:{9+2*w}], v2 offset:{L_QP+512*w}")
    stamp(4)
    for w in range(1, 8):
        lgk(7 - w)
        a(f"v_add_f32 v8, v8, v{8+2*w}")
        a(f"v_add_f32 v9, v9, v{9+2*w}")
    a("v_mov_b32 v23, v3")
    a("v_cvt_pk_bf16_f32 v2, v8, v9")
    a("v_mov_b32 v3, v2")
    a("v_permlane16_swap_b32 v2, v3")
    a("v_mov_b32 v4, v2")
    a("v_mov_b32 v5, v3")
    a("v_permlane32_swap_b32 v2, v4")
    a("v_permlane32_swap_b32 v3, v5")
    def issue_wo2():
        i = wo["n"]
        if i >= 32: return
        t, r = i >> 3, i & 7
        w_ = W + 16 * t + 2 * r
        vm.issue(f"wo{i}", f"buffer_load_dwordx2 v[{w_}:{w_+1}], v23, s[48:51], s15 offen offset:{(r&3)*1024} {wflags}")
        if r == 3: a("s_add_u32 s15, s15, 0x1000")
        if r == 7 and t < 3: a("s_add_u32 s15, s15, 0x7000")
        wo["n"] += 1
    masks = {1: "s[66:67]", 2: "s[68:69]", 3: "s[60:61]"}
    def dots(k):
        base = 8 + 4 * (k & 1)
        out = []
        for q in range(4):
            for m in range(4):
                r = slot(4 * k + m) + q
                c = "0" if q == 0 else f"v{base+m}"
                out.append(f"v_dot2_f32_bf16 v{base+m}, v{r}, v{2+q}, {c}")
        return out
    def reds(k):
        base = 8 + 4 * (k & 1)
        A_, B_, C_, D_ = base, base + 1, base + 2, base + 3
        S = 6 + (k >> 2)
        kk = k & 3
        out = [
            f"v_add_f32_dpp v{A_}, v{A_}, v{A_} row_ror:8 row_mask:0xf bank_mask:0x3",
            f"v_add_f32_dpp v{C_}, v{C_}, v{C_} row_ror:8 row_mask:0xf bank_mask:0x3",
            f"v_add_f32_dpp v{A_}, v{B_}, v{B_} row_ror:8 row_mask:0xf bank_mask:0xc",
            f"v_add_f32_dpp v{C_}, v{D_}, v{D_} row_ror:8 row_mask:0xf bank_mask:0xc",
            f"v_add_f32_dpp v{A_}, v{A_}, v{A_} row_shl:4 row_mask:0xf bank_mask:0x5",
            f"v_add_f32_dpp v{A_}, v{C_}, v{C_} row_shr:4 row_mask:0xf bank_mask:0xa",
            f"v_add_f32_dpp v{A_}, v{A_}, v{A_} quad_perm:[2,3,0,1] row_mask:0xf bank_mask:0xf",
        ]
        if kk == 0:
            out.append(f"v_add_f32_dpp v{S}, v{A_}, v{A_} quad_perm:[1,0,3,2] row_mask:0xf bank_mask:0xf")
        else:
            out.append(f"v_add_f32_dpp v{A_}, v{A_}, v{A_} quad_perm:[1,0,3,2] row_mask:0xf bank_mask:0xf")
            out.append(f"v_cndmask_b32 v{S}, v{S}, v{A_}, {masks[kk]}")
        return out
    consumed = dict(n=0)
    def can_issue():
        i = st["n"]
        if i >= 64: return False
        prev = max([j for j in range(i) if slot(j) == slot(i)], default=-1)
        return prev < consumed["n"]
    def step(i):
        vm.wait(f"kv{i}")
        while st["n"] <= i + D and can_issue(): issue()
    pend = []
    for k in range(8):
        for m in range(4): step(4 * k + m)
        d = dots(k)
        seq = []; di = 0
        for r in pend:
            seq += d[di:di + 2]; di += 2
            seq.append(r)
        seq += d[di:]
        for s_ in seq: a(s_)
        consumed["n"] = 4 * k + 4
        while st["n"] <= 4 * k + 3 + D and can_issue(): issue()
        for _ in range(o.WOK): issue_wo2()
        pend = reds(k)
    while wo["n"] < 32: issue_wo2()
    for s_ in pend: a(s_)
    stamp(5)
    a("s_mov_b32 s13, 0x3db504f3")
    a("v_cvt_pk_bf16_f32 v16, v6, v7")
    a("v_lshlrev_b32 v6, 16, v16")
    a("v_and_b32 v7, s12, v16")
    a("v_mul_f32 v6, s13, v6")
    a("v_mul_f32 v7, s13, v7")
    a("v_cvt_pk_bf16_f32 v16, v6, v7")
    a("v_lshlrev_b32 v6, 16, v16")
    a("v_and_b32 v7, s12, v16")
    a("v_max_f32 v18, v6, v7")
    allreduce("v_max_f32", 18, 17)
    a("v_sub_f32 v6, v6, v18")
    a("v_sub_f32 v7, v7, v18")
    a(f"v_mul_f32 v6, {LOG2E}, v6")
    a(f"v_mul_f32 v7, {LOG2E}, v7")
    a("v_exp_f32 v6, v6")
    a("v_exp_f32 v7, v7")
    a("v_add_f32 v19, v6, v7")
    allreduce("v_add_f32", 19, 17)
    a("s_lshl_b32 s14, s3, 3")
    a("v_mov_b32 v17, s14")
    a("s_mov_b64 exec, 1")
    a(f"ds_write_b64 v17, v[18:19] offset:{L_ML}")
    a("s_mov_b64 exec, -1")
    a("v_and_b32 v16, 15, v0")
    a("v_lshrrev_b32 v17, 4, v0")
    a("v_mul_u32_u24 v2, 272, v16")
    a("v_lshl_add_u32 v2, v17, 2, v2")
    a("s_lshl_b32 s14, s3, 5")
    a(f"s_add_u32 s14, s14, {L_A}")
    a("v_add_u32 v2, s14, v2")
    a("v_mul_u32_u24 v3, 272, v17")
    a("v_lshl_add_u32 v3, v16, 4, v3")
    a("v_lshrrev_b32 v4, 2, v16")
    a("v_lshlrev_b32 v4, 13, v4")
    a("v_and_b32 v16, 3, v16")
    a("v_lshl_add_u32 v4, v16, 4, v4")
    a("v_lshl_add_u32 v4, v17, 2, v4")
    a("s_lshl_b32 s14, s6, 18")
    a("s_lshl_b32 s15, s3, 15")
    a("s_add_u32 s14, s14, s15")
    a("s_lshl_b32 s15, s4, 8")
    a("s_add_u32 s14, s14, s15")
    a("s_lshl_b32 s15, s7, 6")
    a("s_add_u32 s14, s14, s15")
    a("s_lshl_b32 s15, s3, 2")
    bank = [0, 2, 1, 3]
    def bblk(t): return T if t == 0 else W + 16 * (t - 1)
    def transpose(t):
        vm.wait(f"wo{8*t+7}")
        for e in range(4):
            for r2 in range(4):
                lo = W + 16 * t + 2 * (2 * r2) + (e >> 1)
                hi = W + 16 * t + 2 * (2 * r2 + 1) + (e >> 1)
                sel = "s10" if e % 2 == 0 else "s11"
                a(f"v_perm_b32 v{bblk(t)+4*e+r2}, v{hi}, v{lo}, {sel}")
    for t in range(32):
        step(32 + t)
        r = slot(32 + t)
        u, k, m = t >> 4, (t >> 2) & 3, t & 3
        ln = 4 * bank[m] + k
        P = 6 + u
        for q in range(4):
            a(f"v_lshlrev_b32 v{16+2*q}, 16, v{r+q}")
            a(f"v_and_b32 v{17+2*q}, s12, v{r+q}")
        consumed["n"] = 32 + t + 1
        for i in range(8):
            op = "v_mul_f32_dpp" if t == 0 else "v_fmac_f32_dpp"
            a(f"{op} v{8+i}, v{P}, v{16+i} row_newbcast:{ln} row_mask:0xf bank_mask:0xf")
        if t in (10, 12, 14, 16): transpose((t - 10) // 2)
        if t == o.FT:
            a("v_mov_b32 v16, s15")
            a(f"s_mov_b32 s13, {SPIN*8}")
            a.label("L_f_spin")
            a(f"ds_read_b32 v5, v16 offset:{L_F}")
            a("s_sub_u32 s13, s13, 1")
            a("s_cbranch_scc1 L_f_out")
            a("s_waitcnt lgkmcnt(0)")
            a("v_cmp_u_f32 vcc, v5, v5")
            a("s_cbranch_vccz L_f_out")
            a("s_sleep 4")
            a("s_branch L_f_spin")
            a.label("L_f_out")
            a("s_waitcnt lgkmcnt(0)")
    stamp(6)
    for i in range(4): a(f"v_permlane32_swap_b32 v{8+i}, v{12+i}")
    for i in range(4): a(f"v_add_f32 v{8+i}, v{8+i}, v{12+i}")
    for i in range(2): a(f"v_permlane16_swap_b32 v{8+i}, v{10+i}")
    for i in range(2): a(f"v_add_f32 v{8+i}, v{8+i}, v{10+i}")
    for i in range(2): a(f"v_mul_f32 v{8+i}, v{8+i}, v5")
    a("v_cvt_pk_bf16_f32 v10, v8, v9")
    a("v_lshlrev_b32 v12, 16, v10")
    a("v_and_b32 v13, s12, v10")
    a("v_sub_f32 v8, v8, v12")
    a("v_sub_f32 v9, v9, v13")
    a("v_cvt_pk_bf16_f32 v11, v8, v9")
    a("ds_write2_b32 v2, v10, v11 offset0:0 offset1:4")
    a("s_waitcnt lgkmcnt(0)")
    a("s_barrier")
    AF = RB
    for t in range(4): a(f"ds_read_b128 v[{AF+4*t}:{AF+4*t+3}], v3 offset:{L_A+1088*t}")
    stamp(7)
    DD = RB + 16
    for t in range(4):
        lgk(3 - t)
        for e in range(4):
            c = "0" if t == 0 else f"v[{DD+4*e}:{DD+4*e+3}]"
            bb = bblk(t) + 4 * e
            a(f"v_mfma_f32_16x16x32_bf16 v[{DD+4*e}:{DD+4*e+3}], v[{AF+4*t}:{AF+4*t+3}], v[{bb}:{bb+3}], {c}")
    for e in range(4):
        a(f"v_add_f32 v{DD+4*e}, v{DD+4*e}, v{DD+4*e+1}")
        a(f"v_add_f32 v{DD+4*e+2}, v{DD+4*e+2}, v{DD+4*e+3}")
    for e in range(4): a(f"v_add_f32 v{8+e}, v{DD+4*e}, v{DD+4*e+2}")
    a("v_permlane32_swap_b32 v8, v10")
    a("v_permlane32_swap_b32 v9, v11")
    a("v_add_f32 v8, v8, v10")
    a("v_add_f32 v9, v9, v11")
    a("v_permlane16_swap_b32 v8, v9")
    a("v_add_f32 v8, v8, v9")
    a("buffer_store_dword v8, v4, s[56:59], s14 offen sc1")
    stamp(8)
    stamp_flush()
    a("s_endpgm")

    a.label("L_helper", pad=False)
    a("s_setprio 3")
    a("v_lshlrev_b32 v1, 4, v0")
    a("v_mov_b32 v4, -1")
    a("v_mov_b32 v5, -1")
    a("v_mov_b32 v6, -1")
    a("v_mov_b32 v7, -1")
    a("v_lshlrev_b32 v2, 2, v0")
    a("s_mov_b64 exec, 0xffffff")
    a(f"ds_write_b32 v2, v4 offset:{L_ML}")
    a("s_mov_b64 exec, -1")
    a("s_lshr_b32 s8, s2, 3")
    a("s_and_b32 s9, s2, 7")
    a("s_mul_i32 s13, s9, 11")
    a("s_add_u32 s13, s13, s8")
    a("s_cmp_lt_u32 s8, 11")
    a("s_cselect_b32 s13, s13, 99")
    a("s_lshl_b32 s15, s9, 3")
    a("s_add_u32 s15, s15, s8")
    a("s_sub_u32 s15, s15, 24")
    a("s_cmp_ge_u32 s8, 24")
    a("s_cselect_b32 s15, s15, 99")
    a("v_lshrrev_b32 v3, 2, v0")
    a("v_lshlrev_b32 v3, 13, v3")
    a("v_and_b32 v8, 3, v0")
    a("v_lshl_add_u32 v3, v8, 4, v3")
    a("s_lshl_b32 s14, s6, 18")
    a("s_lshl_b32 s8, s4, 8")
    a("s_add_u32 s14, s14, s8")
    a("s_lshl_b32 s8, s7, 6")
    a("s_add_u32 s14, s14, s8")
    a("s_add_u32 s65, s14, 0x20000")
    a("s_lshl_b32 s66, s4, 8")
    a("s_lshl_b32 s8, s6, 7")
    a("s_add_u32 s66, s66, s8")
    a(f"s_add_u32 s66, s66, {OH}")
    a("s_lshl_b32 s8, s7, 3")
    a("s_add_u32 s67, s66, s8")
    a("v_mov_b32 v9, 0")
    a("s_waitcnt lgkmcnt(0)")
    srd(56, 38, WS_SZ)
    srd(52, 16, 2048)
    srd(48, 36, 256)
    a("s_cmp_lt_u32 s13, 86")
    a("s_cbranch_scc1 L_ffn")
    a("buffer_store_dwordx4 v[4:7], v3, s[56:59], s14 offen sc1")
    a("buffer_store_dwordx4 v[4:7], v3, s[56:59], s65 offen sc1")
    a("s_mov_b64 exec, 1")
    a("buffer_store_dwordx2 v[4:5], v9, s[56:59], s67 offen sc1")
    a("v_mov_b32 v10, 1")
    a("s_waitcnt vmcnt(0)")
    a("buffer_store_byte v10, v9, s[48:51], s2 offen sc1")
    a("s_mov_b64 exec, -1")
    stamp(1)
    a("s_barrier")
    a("s_branch L_hdr")
    a.label("L_ffn", pad=False)
    srd(40, 28, 1409024)
    srd(44, 30, 1409024)
    a("buffer_load_dwordx4 v[24:27], v1, s[52:55], 0 offen")
    a("buffer_load_dwordx4 v[28:31], v1, s[52:55], 0 offen offset:1024")
    a("v_lshrrev_b32 v10, 1, v0")
    a("v_and_b32 v11, 1, v0")
    a("v_mul_u32_u24 v12, 44032, v10")
    a("v_lshl_add_u32 v12, v11, 4, v12")
    a("s_lshl_b32 s8, s13, 5")
    G, U = 32, 96
    for t in range(16):
        a(f"buffer_load_dwordx4 v[{G+4*t}:{G+4*t+3}], v12, s[40:43], s8 offen offset:{2752*(t&1)} {fflags}")
        if t & 1 and t < 15: a(f"s_add_u32 s8, s8, {2*2752}")
    a("s_lshl_b32 s8, s13, 5")
    for t in range(16):
        a(f"buffer_load_dwordx4 v[{U+4*t}:{U+4*t+3}], v12, s[44:47], s8 offen offset:{2752*(t&1)} {fflags}")
        if t & 1 and t < 15: a(f"s_add_u32 s8, s8, {2*2752}")
    a("buffer_store_dwordx4 v[4:7], v3, s[56:59], s14 offen sc1")
    a("buffer_store_dwordx4 v[4:7], v3, s[56:59], s65 offen sc1")
    a("v_lshlrev_b32 v13, 13, v10")
    a("v_lshl_add_u32 v2, v11, 5, v13")
    a("s_lshl_b32 s68, s13, 6")
    a(f"s_add_u32 s68, s68, {YB}")
    a("s_add_u32 s69, s68, 0x40000")
    for so in ("s68", "s69"):
        for off in (0, 16):
            a(f"buffer_store_dwordx4 v[4:7], v2, s[56:59], {so} offen offset:{off} sc1")
    a("s_mov_b64 exec, 1")
    a("buffer_store_dwordx2 v[4:5], v9, s[56:59], s67 offen sc1")
    a("s_mov_b64 exec, -1")
    srd(40, 32, 1409024)
    a(f"s_waitcnt vmcnt({32+7})")
    E = [list(range(8, 16)), list(range(16, 24))]
    ln_stats([24, 28], E, [160, 161], [162, 163], [164, 165], [166, 167])
    for b in range(2):
        for i in range(8): a(f"v_sub_f32 v{E[b][i]}, v{E[b][i]}, v{164+b}")
        for q in range(4): rnd2(E[b][2*q], E[b][2*q+1], 160 + q)
        for i in range(8): a(f"v_mul_f32 v{E[b][i]}, v{E[b][i]}, v{166+b}")
        for q in range(4): a(f"v_cvt_pk_bf16_f32 v{24+4*b+q}, v{E[b][2*q]}, v{E[b][2*q+1]}")
    stamp(1)
    a("s_barrier")
    a("s_waitcnt vmcnt(0)")
    a("v_mov_b32 v4, 1")
    a("v_mov_b32 v5, 0")
    a("s_mov_b64 exec, 1")
    a("buffer_store_byte v4, v5, s[48:51], s2 offen sc1")
    a("s_mov_b64 exec, -1")
    stamp(2)
    def gu_pass(base, acc):
        for p in range(8):
            qp = "[0,0,2,2]" if p < 4 else "[1,1,3,3]"
            X = [4 + 2 * (p & 1), 5 + 2 * (p & 1)]
            for b in range(2):
                a(f"v_mov_b32_dpp v{X[b]}, v{24+4*b+(p&3)} quad_perm:{qp} row_mask:0xf bank_mask:0xf")
            A_, B_ = base + 8 * p, base + 8 * p + 4
            for d in range(4):
                a(f"v_perm_b32 v{160+2*d}, v{B_+d}, v{A_+d}, s10")
                a(f"v_perm_b32 v{161+2*d}, v{B_+d}, v{A_+d}, s11")
            for b in range(2):
                for i in range(8):
                    c = "0" if p == 0 else f"v{acc+8*b+i}"
                    a(f"v_dot2_f32_bf16 v{acc+8*b+i}, v{160+i}, v{X[b]}, {c}")
    gu_pass(G, 8)
    a("s_lshl_b32 s8, s13, 14")
    WD = 48
    def wd_load(t):
        if t and t % 4 == 0: a("s_add_u32 s8, s8, 0x1000")
        a(f"buffer_load_dwordx4 v[{WD+4*t}:{WD+4*t+3}], v1, s[40:43], s8 offen offset:{(t&3)*1024} {fflags}")
    for t in range(12): wd_load(t)
    gu_pass(U, 32)
    for t in range(12, 16): wd_load(t)
    accs = [8, 32]
    for i in range(8):
        for c_ in accs: a(f"v_permlane32_swap_b32 v{c_+i}, v{c_+8+i}")
    for i in range(8):
        for c_ in accs: a(f"v_add_f32 v{c_+i}, v{c_+i}, v{c_+8+i}")
    for i in range(4):
        for c_ in accs: a(f"v_permlane16_swap_b32 v{c_+i}, v{c_+4+i}")
    for i in range(4):
        for c_ in accs: a(f"v_add_f32 v{c_+i}, v{c_+i}, v{c_+4+i}")
    for (d_, s_, mod) in ((0, 0, "row_ror:8 row_mask:0xf bank_mask:0x3"), (2, 2, "row_ror:8 row_mask:0xf bank_mask:0x3"),
                          (0, 1, "row_ror:8 row_mask:0xf bank_mask:0xc"), (2, 3, "row_ror:8 row_mask:0xf bank_mask:0xc"),
                          (0, 0, "row_shl:4 row_mask:0xf bank_mask:0x5"), (0, 2, "row_shr:4 row_mask:0xf bank_mask:0xa"),
                          (0, 0, "quad_perm:[2,3,0,1] row_mask:0xf bank_mask:0xf")):
        for c_ in accs: a(f"v_add_f32_dpp v{c_+d_}, v{c_+s_}, v{c_+s_} {mod}")
    rnd2(8, 32, 9)
    k0 = math.sqrt(2.0 / math.pi); c0 = -2 * k0 * math.log2(math.e); c1 = c0 * 0.044715
    a(f"s_mov_b32 s8, {f2h(c1)}")
    a(f"v_mov_b32 v10, {f2h(c0)}")
    a("v_mul_f32 v9, v8, v8")
    a("v_fma_f32 v9, v9, s8, v10")
    a("v_mul_f32 v9, v9, v8")
    a("v_exp_f32 v9, v9")
    a("v_and_b32 v11, 0x24, v0")
    a("v_add_f32 v9, 1.0, v9")
    a("v_rcp_f32 v9, v9")
    a("v_and_b32 v12, 1, v0")
    a("v_lshl_or_b32 v11, v12, 4, v11")
    a("v_mul_f32 v8, v8, v9")
    a("v_cvt_pk_bf16_f32 v8, v8, v8")
    a("v_bfe_u32 v12, v0, 4, 1")
    a("v_lshlrev_b32 v8, 16, v8")
    a("v_lshl_or_b32 v11, v12, 3, v11")
    a("v_mul_f32 v8, v8, v32")
    a("v_bfe_u32 v12, v0, 3, 1")
    a("v_cvt_pk_bf16_f32 v8, v8, v8")
    a("v_lshl_or_b32 v11, v12, 1, v11")
    a(f"ds_write_b16 v11, v8 offset:{L_H}")
    a("v_mov_b32 v12, 0")
    a("s_waitcnt lgkmcnt(0)")
    for q in range(4): a(f"ds_read_b128 v[{24+4*q}:{27+4*q}], v12 offset:{L_H+16*q}")
    a("s_waitcnt lgkmcnt(0)")
    for p in range(8):
        a(f"s_waitcnt vmcnt({14-2*p})")
        A_, B_ = WD + 8 * p, WD + 8 * p + 4
        for d in range(4):
            a(f"v_perm_b32 v{160+2*d}, v{B_+d}, v{A_+d}, s10")
            a(f"v_perm_b32 v{161+2*d}, v{B_+d}, v{A_+d}, s11")
        for b in range(2):
            for i in range(8):
                c = "0" if p == 0 else f"v{8+8*b+i}"
                a(f"v_dot2_f32_bf16 v{8+8*b+i}, v{160+i}, v{24+8*b+p}, {c}")
    a("s_nop 2")
    for b, so in enumerate(("s68", "s69")):
        for hf in range(2):
            a(f"buffer_store_dwordx4 v[{8+8*b+4*hf}:{11+8*b+4*hf}], v2, s[56:59], {so} offen offset:{16*hf} sc1")
    stamp(3)
    a.label("L_hdr")
    a("s_nop 2")
    a("v_mov_b32 v16, 0")
    a("v_lshlrev_b32 v17, 2, v0")
    a(f"s_mov_b32 s14, {SPIN*8}")
    a.label("L_ml_poll")
    a("s_sleep 4")
    for q in range(4): a(f"ds_read_b128 v[{32+4*q}:{35+4*q}], v16 offset:{L_ML+16*q}")
    a("s_sub_u32 s14, s14, 1")
    a("s_cbranch_scc1 L_ml_go")
    a("s_waitcnt lgkmcnt(0)")
    a("v_add_f32 v48, v33, v35")
    for i in range(37, 48, 2): a(f"v_add_f32 v48, v48, v{i}")
    a("v_cmp_u_f32 vcc, v48, v48")
    a("s_cbranch_vccnz L_ml_poll")
    a.label("L_ml_go")
    a("s_waitcnt lgkmcnt(0)")
    stamp(4)
    a("buffer_load_dword v18, v17, s[48:51], 0 offen sc1")
    a("v_max3_f32 v48, v32, v34, v36")
    a("v_max3_f32 v48, v48, v38, v40")
    a("v_max3_f32 v48, v48, v42, v44")
    a("v_max_f32 v48, v48, v46")
    for w in range(8): a(f"v_sub_f32 v{50+w}, v{32+2*w}, v48")
    for w in range(8): a(f"v_mul_f32 v{50+w}, {LOG2E}, v{50+w}")
    for w in range(8): a(f"v_exp_f32 v{50+w}, v{50+w}")
    a("v_mul_f32 v49, v50, v33")
    for w in range(1, 8): a(f"v_fmac_f32 v49, v{50+w}, v{33+2*w}")
    a("s_mov_b64 exec, 1")
    a("buffer_store_dwordx2 v[48:49], v16, s[56:59], s67 offen sc1")
    a("s_mov_b64 exec, -1")
    a("s_mov_b32 s8, 0x01010101")
    a(f"s_mov_b32 s14, {SPIN}")
    a.label("L_fl_poll")
    a("s_waitcnt vmcnt(0)")
    a("v_cmp_ne_u32 vcc, s8, v18")
    a("s_cbranch_vccz L_fl_go")
    a("s_sub_u32 s14, s14, 1")
    a("s_cbranch_scc1 L_fl_go")
    a("s_sleep 16")
    a("buffer_load_dword v18, v17, s[48:51], 0 offen sc1")
    a("s_branch L_fl_poll")
    a.label("L_fl_go")
    stamp(5)
    a(f"s_mov_b32 s14, {SPIN}")
    a.label("L_h_poll")
    a("buffer_load_dwordx4 v[60:63], v16, s[56:59], s66 offen sc1")
    a("buffer_load_dwordx4 v[64:67], v16, s[56:59], s66 offen offset:16 sc1")
    a("s_sub_u32 s14, s14, 1")
    a("s_cbranch_scc1 L_h_go")
    a("s_waitcnt vmcnt(0)")
    a("v_add_f32 v68, v61, v63")
    a("v_add_f32 v69, v65, v67")
    a("v_add_f32 v68, v68, v69")
    a("v_cmp_u_f32 vcc, v68, v68")
    a("s_cbranch_vccz L_h_go")
    a(f"s_sleep {o.HS}")
    a("s_branch L_h_poll")
    a.label("L_h_go")
    a("s_waitcnt vmcnt(0)")
    a("v_max3_f32 v68, v60, v62, v64")
    a("v_max_f32 v68, v68, v66")
    for s_ in range(4): a(f"v_sub_f32 v{70+s_}, v{60+2*s_}, v68")
    a("v_sub_f32 v74, v48, v68")
    for s_ in range(5): a(f"v_mul_f32 v{70+s_}, {LOG2E}, v{70+s_}")
    for s_ in range(5): a(f"v_exp_f32 v{70+s_}, v{70+s_}")
    a("v_mul_f32 v69, v70, v61")
    for s_ in range(1, 4): a(f"v_fmac_f32 v69, v{70+s_}, v{61+2*s_}")
    a("v_rcp_f32 v69, v69")
    a("v_mul_f32 v69, v69, v74")
    for w in range(8): a(f"v_mul_f32 v{50+w}, v{50+w}, v69")
    a("s_mov_b64 exec, 1")
    a(f"ds_write_b128 v16, v[50:53] offset:{L_F}")
    a(f"ds_write_b128 v16, v[54:57] offset:{L_F+16}")
    a("s_mov_b64 exec, -1")
    stamp(6)
    a("s_cmp_lt_u32 s15, 64")
    a("s_cbranch_scc1 L_red")
    stamp_flush()
    a("s_endpgm")
    a.label("L_red", pad=False)
    srd(44, 34, 2048)
    a("v_and_b32 v24, 3, v0")
    a("v_lshlrev_b32 v24, 2, v24")
    a("v_lshrrev_b32 v25, 4, v0")
    a("v_add_u32 v24, v24, v25")
    a("v_lshlrev_b32 v24, 1, v24")
    a("s_lshl_b32 s8, s15, 5")
    a("v_add_u32 v24, s8, v24")
    a("buffer_load_ushort v25, v24, s[52:55], 0 offen")
    a("buffer_load_ushort v26, v24, s[44:47], 0 offen")
    a("s_lshl_b32 s8, s15, 13")
    a(f"s_add_u32 s8, s8, {YB}")
    a("s_add_u32 s9, s8, 0x1000")
    for i in range(52, 64): a(f"v_mov_b32 v{i}, 0")
    def ysum():
        for i in range(4):
            a(f"v_add_f32 v{8+i}, v{32+i}, v{36+i}")
            a(f"v_add_f32 v{12+i}, v{40+i}, v{44+i}")
            a(f"v_add_f32 v{16+i}, v{48+i}, v{52+i}")
            a(f"v_add_f32 v{20+i}, v{56+i}, v{60+i}")
        for i in range(4):
            a(f"v_add_f32 v{8+i}, v{8+i}, v{12+i}")
            a(f"v_add_f32 v{16+i}, v{16+i}, v{20+i}")
        for i in range(4): a(f"v_add_f32 v{8+i}, v{8+i}, v{16+i}")
        a("v_permlane32_swap_b32 v8, v10")
        a("v_permlane32_swap_b32 v9, v11")
        a("v_add_f32 v8, v8, v10")
        a("v_add_f32 v9, v9, v11")
        a("v_permlane16_swap_b32 v8, v9")
        a("v_add_f32 v8, v8, v9")
        a("v_add_f32_dpp v8, v8, v8 row_ror:8 row_mask:0xf bank_mask:0xf")
        a("v_add_f32_dpp v8, v8, v8 row_ror:4 row_mask:0xf bank_mask:0xf")
    a(f"s_mov_b32 s14, {SPIN}")
    a.label("L_yb_poll")
    for i in range(5):
        so = "s8" if i < 4 else "s9"
        a(f"buffer_load_dwordx4 v[{32+4*i}:{35+4*i}], v1, s[56:59], {so} offen offset:{(i&3)*1024} sc1")
    a("s_mov_b64 exec, 0xffffff")
    a("buffer_load_dwordx4 v[52:55], v1, s[56:59], s9 offen offset:1024 sc1")
    a("s_mov_b64 exec, -1")
    a("s_waitcnt vmcnt(0)")
    ysum()
    a("v_cmp_u_f32 vcc, v8, v8")
    a("s_cbranch_vccz L_yb_go")
    a("s_sub_u32 s14, s14, 1")
    a("s_cbranch_scc1 L_yb_go")
    a("s_sleep 16")
    a("s_branch L_yb_poll")
    a.label("L_yb_go")
    a("v_cvt_pk_bf16_f32 v27, v8, v8")
    a("v_lshlrev_b32 v27, 16, v27")
    a("v_lshlrev_b32 v25, 16, v25")
    a("s_lshl_b32 s8, s15, 13")
    a("s_add_u32 s9, s8, 0x1000")
    a("s_mov_b32 s60, 0x000f000f")
    a("s_mov_b32 s61, 0x000f000f")
    a(f"s_mov_b32 s14, {SPIN}")
    stamp(7)
    a("s_barrier")
    stamp(8)
    if o.PS: a(f"s_sleep {o.PS}")
    a.label("L_ya_poll")
    for i in range(8):
        so = "s8" if i < 4 else "s9"
        a(f"buffer_load_dwordx4 v[{32+4*i}:{35+4*i}], v1, s[56:59], {so} offen offset:{(i&3)*1024} sc1")
    a("s_sub_u32 s14, s14, 1")
    a("s_cselect_b32 s13, 0, -1")
    a("s_waitcnt vmcnt(0)")
    ysum()
    a("v_cmp_u_f32 vcc, v8, v8")
    a("v_cvt_pk_bf16_f32 v8, v8, v8")
    a("s_and_b32 vcc_lo, vcc_lo, s13")
    a("s_and_b32 vcc_hi, vcc_hi, s13")
    a("s_cbranch_vccnz L_ya_poll")
    a("v_lshlrev_b32 v8, 16, v8")
    a("v_add_f32 v8, v25, v8")
    a("v_cvt_pk_bf16_f32 v8, v8, v8")
    a("v_lshlrev_b32 v8, 16, v8")
    a("v_add_f32 v8, v27, v8")
    a("v_cvt_pk_bf16_f32 v8, v8, v8")
    a("s_mov_b64 exec, s[60:61]")
    a("buffer_store_short v8, v24, s[44:47], 0 offen")
    stamp(9)
    stamp_flush()
    a.label("L_end", pad=False)
    a("s_endpgm")
    a.raw('.section .rodata,"a"')
    a.raw(".p2align 6")
    a.raw(f".amdhsa_kernel {NAME}_kernel")
    a.raw("  .amdhsa_next_free_vgpr 168")
    a.raw("  .amdhsa_next_free_sgpr 102")
    a.raw("  .amdhsa_accum_offset 168")
    a.raw("  .amdhsa_group_segment_fixed_size 0")
    a.raw("  .amdhsa_kernarg_size 96")
    a.raw("  .amdhsa_user_sgpr_count 2")
    a.raw("  .amdhsa_user_sgpr_kernarg_segment_ptr 1")
    a.raw("  .amdhsa_system_sgpr_workgroup_id_x 1")
    a.raw("  .amdhsa_float_denorm_mode_32 3")
    a.raw(".end_amdhsa_kernel")
    return a.text()

if __name__ == "__main__":
    ap = argparse.ArgumentParser()
    ap.add_argument("-o", default="k.s")
    ap.add_argument("--kv", default="nt")
    ap.add_argument("--w", default="")
    ap.add_argument("--f", default="")
    ap.add_argument("-D", type=int, default=8)
    ap.add_argument("--E0", type=int, default=4)
    ap.add_argument("--E1", type=int, default=12)
    ap.add_argument("--E2", type=int, default=16)
    ap.add_argument("--WO0", type=int, default=0)
    ap.add_argument("--WOK", type=int, default=4)
    ap.add_argument("--FT", type=int, default=24)
    ap.add_argument("--HS", type=int, default=8)
    ap.add_argument("--PS", type=int, default=0)
    ap.add_argument("--stamps", action="store_true")
    args = ap.parse_args()
    hdr = "".join(l for l in open("cdna_kernels/" + NAME + ".s.ref") if l.startswith(";") and "@launch" not in l)
    open(args.o, "w").write(gen(args, hdr))
```
